```python
import torch

def _softmax(x, axis=-1):
    return torch.softmax(x, dim=axis)

def _gelu(x):
    return torch.nn.functional.gelu(x, approximate='tanh')

def _silu(x):
    return torch.nn.functional.silu(x)

def _sigmoid(x):
    return torch.sigmoid(x)

def _layernorm(x, axis=-1, eps=1e-05):
    m = x.mean(dim=axis, keepdim=True)
    v = x.var(dim=axis, keepdim=True, unbiased=False)
    return (x - m) / torch.sqrt(v + eps)

def _scatter_add(tgt, idx, src, axis=0):
    return tgt.clone().index_add_(axis, idx, src)

def _segment_sum(src, seg, n):
    out = torch.zeros((n,) + src.shape[1:], dtype=src.dtype)
    return out.index_add_(0, seg, src)

def _pad(x, pw):
    flat = tuple((v for pair in reversed(pw) for v in pair))
    return torch.nn.functional.pad(x, flat)
kernel_name = 'standalone__window_attn_twins__vision'

def setup_inputs():

    _w = lambda a: (lambda t: t.to(torch.bfloat16) if t.is_floating_point() else t)(torch.as_tensor(a))
    H = W = 384 // 8 * 8
    C = 96
    return {'x': _w((lambda *s: torch.randn(*s, dtype=torch.bfloat16) * 0.8)(1, H, W, C)), 'wq': _w((lambda *s: torch.randn(*s, dtype=torch.bfloat16) * 0.8)(C, C)), 'wkv': _w((lambda *s: torch.randn(*s, dtype=torch.bfloat16) * 0.8)(C, 2 * C)), 'wo': _w((lambda *s: torch.randn(*s, dtype=torch.bfloat16) * 0.05)(C, C))}

def reference(x, wq, wkv, wo):
    B, H, W, C = x.shape
    win = 8
    nh, nw = (H // win, W // win)
    xs = x.reshape(B, nh, win, nw, win, C).mean(axis=(2, 4)).reshape(B, nh * nw, C)
    q = x.reshape(B, H * W, C) @ wq
    kv = xs @ wkv
    k, v = (kv[..., :C].clone(), kv[..., C:].clone())
    scale = C ** (-0.5)
    p = _softmax(torch.einsum('bqc,bkc->bqk', q, k) * scale, axis=-1)
    o = torch.einsum('bqk,bkc->bqc', p, v) @ wo
    return o.reshape(B, H, W, C)
```

```python
import math, struct

H = W = 384
C = 96
NQ = H * W
NK = (H // 8) * (W // 8)
X_BYTES = NQ * C * 2
WS_BYTES = 268435456

XS_OFF = 0
WKVT_OFF = 0x80000
WOT_OFF = 0x90000
KV_OFF = 0x100000
KV_BYTES = 72 * 12288

def f32bits(x):
    return struct.unpack("<I", struct.pack("<f", x))[0]

class Asm:
    def __init__(self):
        self.lines = []
        self.uid = 0
    def __call__(self, s):
        for l in s.strip("\n").split("\n"):
            self.lines.append("    " + l.strip() if not l.strip().endswith(":") else l.strip())
    def label(self, name):
        self.lines.append(name + ":")
    def comment(self, s):
        self.lines.append("    ; " + s)
    def newlabel(self, base):
        self.uid += 1
        return "%s_%d" % (base, self.uid)
    def text(self):
        import re
        for l in self.lines:
            m = re.search(r"offset:(\d+)", l)
            if m:
                v = int(m.group(1))
                if "buffer_" in l:
                    assert v < 4096, "MUBUF offset too large: " + l
                else:
                    assert v < 65536, "DS offset too large: " + l
        return "\n".join(self.lines) + "\n"

def kernel_header(name):
    return """.text
.globl {n}
.p2align 8
.type {n},@function
{n}:
""".format(n=name)

def kernel_desc(name, vgpr, sgpr):
    acc = (vgpr + 3) // 4 * 4
    return """.section .rodata,"a"
.p2align 6
.amdhsa_kernel {n}
  .amdhsa_next_free_vgpr {v}
  .amdhsa_next_free_sgpr {s}
  .amdhsa_accum_offset {a}
  .amdhsa_group_segment_fixed_size 0
  .amdhsa_kernarg_size 56
  .amdhsa_user_sgpr_count 2
  .amdhsa_user_sgpr_kernarg_segment_ptr 1
  .amdhsa_system_sgpr_workgroup_id_x 1
.end_amdhsa_kernel
""".format(n=name, v=vgpr, s=sgpr, a=acc)

def srd(a, d, lo, hi, nbytes):
    a("s_mov_b32 s%d, s%d" % (d, lo))
    a("s_and_b32 s%d, s%d, 0xffff" % (d + 1, hi))
    a("s_mov_b32 s%d, 0x%x" % (d + 2, nbytes))
    a("s_mov_b32 s%d, 0x00020000" % (d + 3))

def srd_off(a, d, lo, hi, off, nbytes):
    a("s_add_u32 s%d, s%d, 0x%x" % (d, lo, off))
    a("s_addc_u32 s%d, s%d, 0" % (d + 1, hi))
    a("s_and_b32 s%d, s%d, 0xffff" % (d + 1, d + 1))
    a("s_mov_b32 s%d, 0x%x" % (d + 2, nbytes))
    a("s_mov_b32 s%d, 0x00020000" % (d + 3))
```

```python
from common import *

NAME = "attn_main_kernel"
NWG = 256
WAVES = 12
STAGE = 49152
LDS = 3 * STAGE
THR = 2.0 ** 24
DIAG = False
EXP_NOSM = False
EXP_NOLDS = False
EXP_NOCHECK = False
EXP_NODMA = False
EXP_NOBAR = False

SB = [0, 16]
NEGM = 32
O = 48
Q = 96
PB = [120, 128]
F = 136
VCUR, VNEXT, L, T0, T1, LANE16, LANE16P = 152, 153, 154, 155, 156, 157, 158
TMP, TMP2, TMP3, TMP4, TMP5, TMP6 = 159, 160, 161, 162, 163, 164
VOUT = 165
NVGPR = 168

S_X, S_OUT, S_KV = 4, 8, 12
S_WAVE, S_PAR, S_CNT = 16, 17, 18
S_RA, S_RB, S_RC = 19, 20, 21
S_SB = 22
S_CST = 23
S_KBCUR = 27
S_THR = 28
S_T0, S_T1, S_T2 = 29, 30, 31
S_WRAPST, S_WRAPD = 32, 33
S_STG2 = 34
S_Q1, S_Q2 = 35, 36
S_M0B = 37
S_SLOWOFF = 38
S_DM = 40
NSGPR = 72

def vr(b, n=1):
    return "v%d" % b if n == 1 else "v[%d:%d]" % (b, b + n - 1)

def koff(x, s):
    return x * 6144 + s * 1024
def voff(x, b, u):
    return 24576 + x * 6144 + (2 * b + u) * 1024

class Gen:
    def __init__(self):
        self.a = Asm()
        self.slow_blocks = []

    def qk_list(self, sbuf, kslot, base, raw=False):
        out = []
        for s in range(6):
            if s == 0:
                c = "0" if raw else vr(NEGM, 16)
            else:
                c = vr(SB[sbuf], 16)
            out.append(dict(d=SB[sbuf], b=Q + 4 * s, c=c, lds=(base, koff(kslot, s))))
        return out
    def pv_list(self, pbuf, vslot, base):
        out = []
        for b in range(3):
            for u in range(2):
                out.append(dict(d=O + 16 * b, b=PB[pbuf] + 4 * u, c=vr(O + 16 * b, 16), lds=(base, voff(vslot, b, u))))
        return out

    def sm_list(self, sbuf):
        S = SB[sbuf]; P = PB[sbuf]
        E = lambda i: (8, "v_exp_f32 v%d, v%d" % (S + i, S + i))
        if EXP_NOSM:
            return [(4, "v_mov_b32 v%d, 0" % T0)]
        seq = [E(0), E(1)]
        for k in range(1, 8):
            seq += [E(2 * k), E(2 * k + 1)]
            kk = k - 1
            if kk == 0:
                pass
            elif kk == 1:
                seq += [(4, "v_add_f32 v%d, v%d, v%d" % (T0, S + 0, S + 2)),
                        (4, "v_add_f32 v%d, v%d, v%d" % (T1, S + 1, S + 3))]
            else:
                seq += [(4, "v_add_f32 v%d, v%d, v%d" % (T0, S + 2 * kk, T0)),
                        (4, "v_add_f32 v%d, v%d, v%d" % (T1, S + 2 * kk + 1, T1))]
            seq += [(4, "v_cvt_pk_bf16_f32 v%d, v%d, v%d" % (P + kk, S + 2 * kk, S + 2 * kk + 1))]
        seq += [(4, "v_add_f32 v%d, v%d, v%d" % (T0, S + 14, T0)),
                (4, "v_add_f32 v%d, v%d, v%d" % (T1, S + 15, T1)),
                (4, "v_cvt_pk_bf16_f32 v%d, v%d, v%d" % (P + 7, S + 14, S + 15)),
                (4, "v_add_f32 v%d, v%d, v%d" % (T0, T0, T1))]
        return seq

    def slot(self, mf, valu, pre_issued, nxt, valu_start=0, extra=None):
        self._extra = extra or []
        if EXP_NOLDS:
            a = self.a
            n = len(mf)
            ng = n - valu_start
            total = sum(c for c, _ in valu)
            gaps = [[] for _ in range(n)]
            acc = 0
            for c, t in valu:
                g = valu_start + min(ng - 1, int((acc + c / 2.0) * ng / total)) if total else 0
                gaps[g].append(t)
                acc += c
            for k in range(n):
                m = mf[k]
                a("v_mfma_f32_32x32x16_bf16 %s, %s, %s, %s" % (vr(m["d"], 16), vr(F + 4 * (k % 4), 4), vr(m["b"], 4), m["c"]))
                for t in gaps[k]:
                    a(t)
            return 3 if nxt else 0
        return self.slot_real(mf, valu, pre_issued, nxt, valu_start)

    def slot_real(self, mf, valu, pre_issued, nxt, valu_start=0):
        a = self.a
        n = len(mf)
        sh = (-n) % 4
        assert pre_issued == 0 or sh == 0
        allm = mf + nxt[:3]
        issued = pre_issued
        ng = n - valu_start
        total = sum(c for c, _ in valu)
        gaps = [[] for _ in range(n)]
        acc = 0
        for c, t in valu:
            g = valu_start + min(ng - 1, int((acc + c / 2.0) * ng / total)) if total else 0
            gaps[g].append(t)
            acc += c
        for k in range(n):
            while issued <= k:
                base, off = allm[issued]["lds"]
                a("ds_read_b128 %s, v%d offset:%d" % (vr(F + 4 * ((issued + sh) % 4), 4), base, off))
                issued += 1
            outstanding_after = issued - 1 - k
            a("s_waitcnt lgkmcnt(%d)" % outstanding_after)
            m = mf[k]
            a("v_mfma_f32_32x32x16_bf16 %s, %s, %s, %s" % (vr(m["d"], 16), vr(F + 4 * ((k + sh) % 4), 4), vr(m["b"], 4), m["c"]))
            while issued < len(allm) and issued <= k + 3:
                base, off = allm[issued]["lds"]
                a("ds_read_b128 %s, v%d offset:%d" % (vr(F + 4 * ((issued + sh) % 4), 4), base, off))
                issued += 1
            if self._extra and k % 3 == 1 and k // 3 < len(self._extra):
                a(self._extra[k // 3])
            for t in gaps[k]:
                a(t)
        return issued - n

    def check(self, sbuf, slow_soff_expr):
        a = self.a
        ls = a.newlabel("L_slow"); lb = a.newlabel("L_back")
        if not EXP_NOCHECK:
            a("v_cmp_nge_f32 vcc, s%d, v%d" % (S_THR, T0))
            a("s_cbranch_vccnz %s" % ls)
        a.label(lb)
        a("v_add_f32 v%d, v%d, v%d" % (L, L, T0))
        self.slow_blocks.append((ls, lb, sbuf, slow_soff_expr))

    def emit_slow(self, ls, lb, sbuf, soff_expr):
        a = self.a
        S = SB[sbuf]; SN = SB[1 - sbuf]; P = PB[sbuf]
        a.label(ls)
        for l in soff_expr:
            a(l)
        a("v_mov_b32 v%d, v%d" % (TMP2, NEGM))
        a("s_nop 7")
        fr = [NEGM, NEGM + 4, NEGM + 8, NEGM + 12, P, P + 4]
        for s in range(6):
            if s == 3:
                a("s_add_u32 s%d, s%d, 3072" % (S_SLOWOFF, S_SLOWOFF))
            a("buffer_load_dwordx4 %s, v%d, s[%d:%d], s%d offen offset:%d" % (vr(fr[s], 4), LANE16, S_KV, S_KV + 3, S_SLOWOFF, (s % 3) * 1024))
        a("s_waitcnt vmcnt(0)")
        for s in range(6):
            c = "0" if s == 0 else vr(S, 16)
            a("v_mfma_f32_32x32x16_bf16 %s, %s, %s, %s" % (vr(S, 16), vr(fr[s], 4), vr(Q + 4 * s, 4), c))
        a("s_nop 15"); a("s_nop 15")
        self.rowmax(S, TMP3)
        a("v_max_f32 v%d, v%d, -v%d" % (TMP3, TMP3, TMP2))
        a("v_sub_f32 v%d, -v%d, v%d" % (TMP4, TMP2, TMP3))
        a("v_exp_f32 v%d, v%d" % (TMP5, TMP4))
        a("s_nop 1")
        for i in range(48):
            a("v_mul_f32 v%d, v%d, v%d" % (O + i, O + i, TMP5))
        a("v_mul_f32 v%d, v%d, v%d" % (L, L, TMP5))
        for i in range(16):
            a("v_add_f32 v%d, v%d, v%d" % (SN + i, SN + i, TMP4))
        self.exp_block(S, P, TMP3)
        for i in range(16):
            a("v_sub_f32 v%d, 0, v%d" % (NEGM + i, TMP3))
        a("s_nop 1")
        a("s_branch %s" % lb)

    def rowmax(self, S, dst):
        a = self.a
        a("v_max3_f32 v%d, v%d, v%d, v%d" % (dst, S, S + 1, S + 2))
        for i in range(3, 15, 2):
            a("v_max3_f32 v%d, v%d, v%d, v%d" % (dst, dst, S + i, S + i + 1))
        a("v_max_f32 v%d, v%d, v%d" % (dst, dst, S + 15))
        a("v_mov_b32 v%d, v%d" % (TMP, dst))
        a("s_nop 1")
        a("v_permlane32_swap_b32 v%d, v%d" % (dst, TMP))
        a("s_nop 1")
        a("v_max_f32 v%d, v%d, v%d" % (dst, dst, TMP))

    def exp_block(self, S, P, mreg):
        a = self.a
        for i in range(16):
            a("v_sub_f32 v%d, v%d, v%d" % (S + i, S + i, mreg))
        for i in range(16):
            a("v_exp_f32 v%d, v%d" % (S + i, S + i))
        a("s_nop 1")
        a("v_add_f32 v%d, v%d, v%d" % (T0, S, S + 1))
        for i in range(2, 16):
            a("v_add_f32 v%d, v%d, v%d" % (T0, T0, S + i))
        for k in range(8):
            a("v_cvt_pk_bf16_f32 v%d, v%d, v%d" % (P + k, S + 2 * k, S + 2 * k + 1))

    def first_tile(self, kslot, base):
        a = self.a
        mf = self.qk_list(0, kslot, base, raw=True)
        for k, m in enumerate(mf):
            a("ds_read_b128 %s, v%d offset:%d" % (vr(F + 4 * (k % 4), 4), m["lds"][0], m["lds"][1]))
            if k % 4 == 3 or k == 5:
                a("s_waitcnt lgkmcnt(0)")
                for kk in range(k - (k % 4), k + 1):
                    mm = mf[kk]
                    a("v_mfma_f32_32x32x16_bf16 %s, %s, %s, %s" % (vr(mm["d"], 16), vr(F + 4 * (kk % 4), 4), vr(mm["b"], 4), mm["c"]))
        a("s_nop 15"); a("s_nop 15")
        self.rowmax(SB[0], TMP3)
        self.exp_block(SB[0], PB[0], TMP3)
        a("v_mov_b32 v%d, v%d" % (L, T0))
        for i in range(16):
            a("v_sub_f32 v%d, 0, v%d" % (NEGM + i, TMP3))
        a("s_nop 1")

    def dma_deferred(self, guard_max_stage=None):
        a = self.a
        a("s_add_u32 s%d, s%d, s%d" % (S_T0, S_RC, S_M0B))
        a("s_mov_b32 m0, s%d" % S_T0)
        for i in range(4):
            a("s_add_u32 s%d, s%d, s%d" % (S_DM + i, S_SB, S_CST + i))
        if guard_max_stage is not None:
            a("s_cmp_gt_u32 s%d, %d" % (S_STG2, guard_max_stage))
            for i in range(4):
                a("s_cselect_b32 s%d, 0x40000000, s%d" % (S_DM + i, S_DM + i))
        out = []
        for i in range(4):
            out.append("buffer_load_dwordx4 v%d, s[%d:%d], s%d offen offset:%d lds" % (LANE16, S_KV, S_KV + 3, S_DM + i, i * 1024))
        a("s_add_u32 s%d, s%d, 1" % (S_STG2, S_STG2))
        a("s_add_u32 s%d, s%d, %d" % (S_SB, S_SB, STAGE))
        a("s_cmp_eq_u32 s%d, s%d" % (S_STG2, S_WRAPST))
        a("s_cselect_b32 s%d, s%d, 0" % (S_T0, S_WRAPD))
        a("s_sub_u32 s%d, s%d, s%d" % (S_SB, S_SB, S_T0))
        return out

    def dma(self, guard_max_stage=None):
        a = self.a
        skip = None
        if guard_max_stage is not None:
            skip = a.newlabel("L_nodma")
            a("s_cmp_gt_u32 s%d, %d" % (S_STG2, guard_max_stage))
            a("s_cbranch_scc1 %s" % skip)
        a("s_add_u32 s%d, s%d, s%d" % (S_T0, S_RC, S_M0B))
        a("s_mov_b32 m0, s%d" % S_T0)
        for i in range(4):
            a("s_add_u32 s%d, s%d, s%d" % (S_T1, S_SB, S_CST + i))
            if not EXP_NODMA:
                a("buffer_load_dwordx4 v%d, s[%d:%d], s%d offen offset:%d lds" % (LANE16, S_KV, S_KV + 3, S_T1, i * 1024))
        if skip:
            a.label(skip)
        a("s_add_u32 s%d, s%d, 1" % (S_STG2, S_STG2))
        a("s_add_u32 s%d, s%d, %d" % (S_SB, S_SB, STAGE))
        a("s_cmp_eq_u32 s%d, s%d" % (S_STG2, S_WRAPST))
        a("s_cselect_b32 s%d, s%d, 0" % (S_T0, S_WRAPD))
        a("s_sub_u32 s%d, s%d, s%d" % (S_SB, S_SB, S_T0))

    def rotate(self, lanereg):
        a = self.a
        a("s_mov_b32 s%d, s%d" % (S_T0, S_RA))
        a("s_mov_b32 s%d, s%d" % (S_RA, S_RB))
        a("s_mov_b32 s%d, s%d" % (S_RB, S_RC))
        a("s_mov_b32 s%d, s%d" % (S_RC, S_T0))
        a("v_add_u32 v%d, s%d, v%d" % (VCUR, S_RA, lanereg))
        a("v_add_u32 v%d, s%d, v%d" % (VNEXT, S_RB, lanereg))

    def stage_top(self, lanereg, vm="vmcnt(0)", guard=None, rotate=True):
        a = self.a
        if DIAG:
            a("s_memtime s[64:65]")
            a("s_waitcnt lgkmcnt(0)")
        a("s_waitcnt %s" % vm)
        if DIAG:
            a("s_memtime s[66:67]")
            a("s_waitcnt lgkmcnt(0)")
            a("s_sub_u32 s64, s66, s64")
            a("s_add_u32 s68, s68, s64")
        if not EXP_NOBAR:
            a("s_barrier")
        if DIAG:
            a("s_memtime s[64:65]")
            a("s_waitcnt lgkmcnt(0)")
            a("s_sub_u32 s64, s64, s66")
            a("s_add_u32 s69, s69, s64")
        if rotate:
            self.rotate(lanereg)
        self.dma(guard)

    def stage_top2(self, lanereg, guard=None):
        a = self.a
        self.rotate(lanereg)
        d = self.dma_deferred(guard)
        a("s_waitcnt vmcnt(0)")
        a("s_barrier")
        return d

    def store_out(self, qoff_sgpr):
        a = self.a
        a("v_mov_b32 v%d, v%d" % (TMP, L))
        a("v_mov_b32 v%d, v%d" % (TMP2, L))
        a("s_nop 1")
        a("v_permlane32_swap_b32 v%d, v%d" % (TMP, TMP2))
        a("s_nop 1")
        a("v_add_f32 v%d, v%d, v%d" % (TMP, TMP, TMP2))
        a("v_rcp_f32 v%d, v%d" % (TMP, TMP))
        a("v_lshrrev_b32 v%d, 4, v%d" % (TMP2, LANE16))
        a("v_and_b32 v%d, 31, v%d" % (TMP3, TMP2))
        a("v_lshrrev_b32 v%d, 5, v%d" % (TMP2, TMP2))
        a("v_mul_u32_u24 v%d, 192, v%d" % (TMP3, TMP3))
        a("v_lshl_add_u32 v%d, v%d, 3, v%d" % (TMP3, TMP2, TMP3))
        a("v_add_u32 v%d, s%d, v%d" % (VOUT, qoff_sgpr, TMP3))
        idx = 0
        for b in range(3):
            for g in range(4):
                r0 = O + 16 * b + 4 * g
                for r in range(4):
                    a("v_mul_f32 v%d, v%d, v%d" % (r0 + r, r0 + r, TMP))
                d = SB[0] + 2 * idx
                a("v_cvt_pk_bf16_f32 v%d, v%d, v%d" % (d, r0, r0 + 1))
                a("v_cvt_pk_bf16_f32 v%d, v%d, v%d" % (d + 1, r0 + 2, r0 + 3))
                a("buffer_store_dwordx2 %s, v%d, s[%d:%d], 0 offen offset:%d" % (vr(d, 2), VOUT, S_OUT, S_OUT + 3, 64 * b + 16 * g))
                idx += 1

    def load_q(self, qoff_sgpr):
        a = self.a
        a("v_lshrrev_b32 v%d, 4, v%d" % (TMP2, LANE16))
        a("v_and_b32 v%d, 31, v%d" % (TMP3, TMP2))
        a("v_lshrrev_b32 v%d, 5, v%d" % (TMP2, TMP2))
        a("v_mul_u32_u24 v%d, 192, v%d" % (TMP3, TMP3))
        a("v_lshl_add_u32 v%d, v%d, 4, v%d" % (TMP3, TMP2, TMP3))
        for s in range(6):
            a("buffer_load_dwordx4 %s, v%d, s[%d:%d], s%d offen offset:%d" % (vr(Q + 4 * s, 4), TMP3, S_X, S_X + 3, qoff_sgpr, 32 * s))

    def init_acc(self):
        a = self.a
        for i in range(48):
            a("v_mov_b32 v%d, 0" % (O + i))

    def gen(self):
        a = self.a
        a("s_cmp_ge_u32 s2, %d" % NWG)
        a("s_cbranch_scc1 L_main_end")
        if DIAG:
            a("s_memtime s[50:51]")
            a("s_memrealtime s[52:53]")
            a("s_mov_b32 s68, 0")
            a("s_mov_b32 s69, 0")
        a("s_load_dwordx2 s[40:41], s[0:1], 0")
        a("s_load_dwordx2 s[42:43], s[0:1], 32")
        a("s_load_dwordx2 s[44:45], s[0:1], 48")
        a("v_lshrrev_b32 v%d, 6, v0" % TMP)
        a("v_and_b32 v%d, 63, v0" % LANE16)
        a("v_lshlrev_b32 v%d, 4, v%d" % (LANE16, LANE16))
        a("v_readfirstlane_b32 s%d, v%d" % (S_WAVE, TMP))
        a("s_waitcnt lgkmcnt(0)")
        srd(a, S_X, 40, 41, X_BYTES)
        srd(a, S_OUT, 42, 43, X_BYTES)
        srd_off(a, S_KV, 44, 45, KV_OFF, KV_BYTES)
        a("s_mov_b32 s%d, 0x%x" % (S_THR, f32bits(THR)))
        a("s_and_b32 s%d, s%d, 1" % (S_PAR, S_WAVE))
        a("s_mul_i32 s%d, s2, 576" % S_T0)
        a("s_lshl_b32 s%d, s%d, 5" % (S_T1, S_WAVE))
        a("s_add_u32 s%d, s%d, s%d" % (S_T1, S_T1, S_T0))
        a("s_mul_i32 s%d, s%d, 192" % (S_Q1, S_T1))
        a("s_lshr_b32 s%d, s%d, 1" % (S_T1, S_WAVE))
        a("s_lshl_b32 s%d, s%d, 5" % (S_T1, S_T1))
        a("s_add_u32 s%d, s%d, s%d" % (S_T1, S_T1, S_T0))
        a("s_add_u32 s%d, s%d, 384" % (S_T1, S_T1))
        a("s_mul_i32 s%d, s%d, 192" % (S_Q2, S_T1))
        a("s_lshl_b32 s%d, s%d, 12" % (S_M0B, S_WAVE))
        a("s_cmp_ge_u32 s%d, 6" % S_WAVE)
        a("s_cselect_b32 s%d, 6, 0" % S_T0)
        a("s_sub_u32 s%d, s%d, s%d" % (S_T0, S_WAVE, S_T0))
        a("s_lshl_b32 s%d, s%d, 2" % (S_T0, S_T0))
        for i in range(4):
            a("s_add_u32 s%d, s%d, %d" % (S_T1, S_T0, i))
            a("s_mul_i32 s%d, s%d, 43691" % (S_T2, S_T1))
            a("s_lshr_b32 s%d, s%d, 18" % (S_T2, S_T2))
            a("s_mul_i32 s%d, s%d, 6" % (S_CST + i, S_T2))
            a("s_sub_u32 s%d, s%d, s%d" % (S_T1, S_T1, S_CST + i))
            a("s_mul_i32 s%d, s%d, 12288" % (S_CST + i, S_T2))
            a("s_lshl_b32 s%d, s%d, 10" % (S_T1, S_T1))
            a("s_add_u32 s%d, s%d, s%d" % (S_CST + i, S_CST + i, S_T1))
            a("s_sub_u32 s%d, s%d, %d" % (S_CST + i, S_CST + i, i * 1024))
        a("s_cmp_ge_u32 s%d, 6" % S_WAVE)
        a("s_cselect_b32 s%d, 0x%x, 0" % (S_SB, (-18432) & 0xffffffff))
        a("s_cselect_b32 s%d, 19, 18" % S_WRAPST)
        a("s_mov_b32 s%d, 884736" % S_WRAPD)
        a("s_cselect_b32 s%d, 909312, s%d" % (S_WRAPD, S_WRAPD))
        a("s_mov_b32 s%d, 0" % S_STG2)
        a("s_mov_b32 s%d, 0" % S_RA)
        a("s_mov_b32 s%d, %d" % (S_RB, STAGE))
        a("s_mov_b32 s%d, %d" % (S_RC, 2 * STAGE))
        a("s_mov_b32 s%d, 0" % S_RC); self.dma()
        a("s_mov_b32 s%d, %d" % (S_RC, STAGE)); self.dma()
        a("s_mov_b32 s%d, %d" % (S_RC, 2 * STAGE))
        self.load_q(S_Q1)
        self.init_acc()
        a("v_mov_b32 v%d, v%d" % (VCUR, LANE16))
        a("v_add_u32 v%d, s%d, v%d" % (VNEXT, S_RB, LANE16))
        a("s_mov_b32 s%d, 0" % S_KBCUR)
        self.stage_top(LANE16, rotate=False)
        self.first_tile(0, VCUR)
        mf = self.qk_list(1, 1, VCUR)
        self.slot(mf, [], 0, [])
        a("s_waitcnt lgkmcnt(0)")
        mfA = self.qk_list(0, 2, VCUR) + self.pv_list(0, 2, VCUR)
        mfB = self.qk_list(1, 3, VCUR) + self.pv_list(1, 3, VCUR)
        nxt0 = self.qk_list(0, 0, VNEXT)
        pre = self.slot(mfA, self.sm_list(1), 0, mfB, valu_start=2)
        self.check(1, ["s_mov_b32 s%d, %d" % (S_SLOWOFF, 1 * 12288)])
        pre = self.slot(mfB, self.sm_list(0), pre, nxt0)
        self.check(0, ["s_mov_b32 s%d, %d" % (S_SLOWOFF, 2 * 12288)])
        assert pre == 3
        a("s_mov_b32 s%d, 17" % S_CNT)
        a.label("L_r1")
        dq = self.stage_top2(LANE16)
        a("s_add_u32 s%d, s%d, %d" % (S_KBCUR, S_KBCUR, STAGE))
        slots = []
        for i in range(4):
            sq = i % 2
            ss = (i + 1) % 2
            pv = i % 2
            slots.append(self.qk_list(sq, i, VCUR) + self.pv_list(pv, i, VCUR))
        pre = 3
        for i in range(4):
            nxt = slots[i + 1] if i < 3 else nxt0
            pre = self.slot(slots[i], self.sm_list((i + 1) % 2), pre, nxt, extra=(dq if i == 0 else None))
            self.check((i + 1) % 2, ["s_add_u32 s%d, s%d, %d" % (S_SLOWOFF, S_KBCUR, (i - 1) * 12288) if i >= 1 else
                                     "s_sub_u32 s%d, s%d, 12288" % (S_SLOWOFF, S_KBCUR)])
        assert pre == 3
        a("s_sub_u32 s%d, s%d, 1" % (S_CNT, S_CNT))
        a("s_cmp_lg_u32 s%d, 0" % S_CNT)
        a("s_cbranch_scc1 L_r1")
        a("s_waitcnt lgkmcnt(0)")
        if DIAG:
            a("s_memtime s[54:55]")
            a("s_waitcnt lgkmcnt(0)")
        a("s_mul_i32 s%d, s%d, 6144" % (S_T0, S_PAR))
        a("v_add_u32 v%d, s%d, v%d" % (LANE16P, S_T0, LANE16))
        self.stage_top(LANE16)
        mf = self.pv_list(0, 0, VCUR)
        self.slot(mf, self.sm_list(1), 0, [])
        self.check(1, ["s_mov_b32 s%d, %d" % (S_SLOWOFF, 71 * 12288)])
        self.load_q2_pending = True
        a("s_nop 1")
        mf = self.pv_list(1, 1, VCUR)
        self.slot(mf, [], 0, [])
        self.load_q(S_Q2)
        a("s_nop 15"); a("s_nop 7")
        self.store_out(S_Q1)
        self.init_acc()
        a("v_add_u32 v%d, s%d, v%d" % (VCUR, S_RA, LANE16P))
        a("v_add_u32 v%d, s%d, v%d" % (VNEXT, S_RB, LANE16P))
        a("s_mul_i32 s%d, s%d, 12288" % (S_KBCUR, S_PAR))
        a("s_waitcnt vmcnt(12)")
        self.first_tile(0, VCUR)
        mf = self.qk_list(1, 2, VCUR)
        nxt0p = self.qk_list(0, 0, VNEXT)
        pre = self.slot(mf, [], 0, nxt0p)
        assert pre == 3
        a("s_mov_b32 s%d, 17" % S_CNT)
        a.label("L_r2")
        dq = self.stage_top2(LANE16P, guard=36)
        a("s_add_u32 s%d, s%d, %d" % (S_KBCUR, S_KBCUR, STAGE))
        slotA = self.qk_list(0, 0, VCUR) + self.pv_list(0, 0, VCUR)
        slotB = self.qk_list(1, 2, VCUR) + self.pv_list(1, 2, VCUR)
        pre = self.slot(slotA, self.sm_list(1), 3, slotB, extra=dq)
        self.check(1, ["s_sub_u32 s%d, s%d, 24576" % (S_SLOWOFF, S_KBCUR)])
        pre = self.slot(slotB, self.sm_list(0), pre, nxt0p)
        self.check(0, ["s_mov_b32 s%d, s%d" % (S_SLOWOFF, S_KBCUR)])
        assert pre == 3
        a("s_sub_u32 s%d, s%d, 1" % (S_CNT, S_CNT))
        a("s_cmp_lg_u32 s%d, 0" % S_CNT)
        a("s_cbranch_scc1 L_r2")
        a("s_waitcnt lgkmcnt(0)")
        self.stage_top(LANE16P, guard=36)
        mf = self.pv_list(0, 0, VCUR)
        self.slot(mf, self.sm_list(1), 0, [])
        self.check(1, ["s_mul_i32 s%d, s%d, 12288" % (S_SLOWOFF, S_PAR), "s_add_u32 s%d, s%d, %d" % (S_SLOWOFF, S_SLOWOFF, 70 * 12288)])
        a("s_nop 1")
        mf = self.pv_list(1, 2, VCUR)
        self.slot(mf, [], 0, [])
        a("s_nop 15"); a("s_nop 7")
        MB = STAGE
        a("s_lshr_b32 s%d, s%d, 1" % (S_T0, S_WAVE))
        a("s_mul_i32 s%d, s%d, 13312" % (S_T0, S_T0))
        a("s_add_u32 s%d, s%d, %d" % (S_T0, S_T0, MB))
        a("v_add_u32 v%d, s%d, v%d" % (TMP6, S_T0, LANE16))
        a("s_cmp_eq_u32 s%d, 0" % S_PAR)
        a("s_cbranch_scc1 L_merge_wait")
        for c in range(12):
            a("ds_write_b128 v%d, %s offset:%d" % (TMP6, vr(O + 4 * c, 4), c * 1024))
        a("v_lshrrev_b32 v%d, 2, v%d" % (TMP5, LANE16))
        a("v_add_u32 v%d, s%d, v%d" % (TMP5, S_T0, TMP5))
        a("ds_write_b32 v%d, v%d offset:%d" % (TMP5, NEGM, 12288))
        a("ds_write_b32 v%d, v%d offset:%d" % (TMP5, L, 12288 + 256))
        a("s_waitcnt lgkmcnt(0)")
        a.label("L_merge_wait")
        a("s_barrier")
        a("s_cmp_lg_u32 s%d, 0" % S_PAR)
        a("s_cbranch_scc1 L_main_end")
        a("v_lshrrev_b32 v%d, 2, v%d" % (TMP5, LANE16))
        a("v_add_u32 v%d, s%d, v%d" % (TMP5, S_T0, TMP5))
        a("ds_read_b32 v%d, v%d offset:%d" % (TMP2, TMP5, 12288))
        a("ds_read_b32 v%d, v%d offset:%d" % (TMP3, TMP5, 12288 + 256))
        a("s_waitcnt lgkmcnt(0)")
        a("v_min_f32 v%d, v%d, v%d" % (TMP4, NEGM, TMP2))
        a("v_sub_f32 v%d, v%d, v%d" % (TMP, TMP4, NEGM))
        a("v_sub_f32 v%d, v%d, v%d" % (TMP2, TMP4, TMP2))
        a("v_exp_f32 v%d, v%d" % (TMP, TMP))
        a("v_exp_f32 v%d, v%d" % (TMP2, TMP2))
        a("s_nop 1")
        a("v_mul_f32 v%d, v%d, v%d" % (L, L, TMP))
        a("v_fma_f32 v%d, v%d, v%d, v%d" % (L, TMP3, TMP2, L))
        for c in range(12):
            d = SB[0] + 4 * (c % 4)
            a("ds_read_b128 %s, v%d offset:%d" % (vr(d, 4), TMP6, c * 1024))
            a("s_waitcnt lgkmcnt(0)")
            for r in range(4):
                a("v_mul_f32 v%d, v%d, v%d" % (O + 4 * c + r, O + 4 * c + r, TMP))
                a("v_fma_f32 v%d, v%d, v%d, v%d" % (O + 4 * c + r, d + r, TMP2, O + 4 * c + r))
        self.store_out(S_Q2)
        a.label("L_main_end")
        if DIAG:
            a("s_memtime s[56:57]")
            a("s_memrealtime s[58:59]")
            a("s_waitcnt lgkmcnt(0)")
            a("s_sub_u32 s56, s56, s50")
            a("s_sub_u32 s54, s54, s50")
            a("s_sub_u32 s58, s58, s52")
            a("s_load_dwordx2 s[44:45], s[0:1], 48")
            a("s_waitcnt lgkmcnt(0)")
            srd(a, 60, 44, 45, WS_BYTES)
            a("v_mov_b32 v0, s56")
            a("v_mov_b32 v1, s54")
            a("v_mov_b32 v2, s68")
            a("v_mov_b32 v3, s69")
            a("s_mul_i32 s29, s2, 12")
            a("s_add_u32 s29, s29, s%d" % S_WAVE)
            a("s_lshl_b32 s29, s29, 4")
            a("s_add_u32 s29, s29, 0x8000000")
            a("v_mov_b32 v4, s29")
            a("buffer_store_dwordx4 v[0:3], v4, s[60:63], 0 offen")
        a("s_endpgm")
        for blk in self.slow_blocks:
            self.emit_slow(*blk)
        return kernel_header(NAME) + a.text() + kernel_desc(NAME, NVGPR, NSGPR)

def gen():
    return Gen().gen()
```

```python
from common import *

NAME = "prep_means_kernel"
NWG_MEANS = 288
NWG_TR_KV = 18
NWG_TR_O = 9
NWG = NWG_MEANS + NWG_TR_KV + NWG_TR_O
LDS = 4 * 6144

def gen():
    a = Asm()
    a("s_cmp_ge_u32 s2, %d" % NWG)
    a("s_cbranch_scc1 L_p1_end")
    a("s_load_dwordx2 s[4:5], s[0:1], 0")
    a("s_load_dwordx2 s[6:7], s[0:1], 16")
    a("s_load_dwordx2 s[20:21], s[0:1], 24")
    a("s_load_dwordx2 s[22:23], s[0:1], 48")
    a("s_waitcnt lgkmcnt(0)")
    srd(a, 8, 4, 5, X_BYTES)
    srd(a, 12, 22, 23, WS_BYTES)
    srd(a, 16, 6, 7, 96 * 192 * 2)
    srd(a, 24, 20, 21, 96 * 96 * 2)
    a("s_cmp_ge_u32 s2, %d" % NWG_MEANS)
    a("s_cbranch_scc1 L_p1_tr")
    a("v_lshrrev_b32 v1, 6, v0")
    a("v_and_b32 v2, 63, v0")
    a("s_nop 0")
    a("v_readfirstlane_b32 s28, v1")
    a("s_lshl_b32 s29, s2, 2")
    a("s_add_u32 s29, s29, s28")
    a("s_mul_i32 s30, s29, 43691")
    a("s_lshr_b32 s30, s30, 20")
    a("s_mul_i32 s31, s30, 24")
    a("s_sub_u32 s31, s29, s31")
    a("s_mul_i32 s32, s30, 589824")
    a("s_mul_i32 s33, s31, 3072")
    a("s_add_u32 s32, s32, s33")
    a("v_lshlrev_b32 v3, 4, v2")
    D0 = 8
    for dy in range(8):
        for i in range(3):
            r = D0 + (dy * 3 + i) * 4
            if dy == 0:
                a("buffer_load_dwordx4 v[%d:%d], v3, s[8:11], s32 offen offset:%d" % (r, r + 3, i * 1024))
            else:
                a("buffer_load_dwordx4 v[%d:%d], v3, s[8:11], s33 offen offset:%d" % (r, r + 3, i * 1024))
        if dy < 7:
            src = "s32" if dy == 0 else "s33"
            a("s_add_u32 s33, %s, 73728" % src)
    ACC = 104
    for dy in range(8):
        for i in range(3):
            idx = dy * 3 + i
            a("s_waitcnt vmcnt(%d)" % (23 - idx))
            r = D0 + idx * 4
            for d in range(4):
                acc_lo = ACC + i * 8 + 2 * d
                acc_hi = acc_lo + 1
                if dy == 0:
                    a("v_lshlrev_b32 v%d, 16, v%d" % (acc_lo, r + d))
                    a("v_and_b32 v%d, 0xffff0000, v%d" % (acc_hi, r + d))
                else:
                    a("v_lshlrev_b32 v4, 16, v%d" % (r + d))
                    a("v_and_b32 v5, 0xffff0000, v%d" % (r + d))
                    a("v_add_f32 v%d, v%d, v4" % (acc_lo, acc_lo))
                    a("v_add_f32 v%d, v%d, v5" % (acc_hi, acc_hi))
    a("s_mul_i32 s34, s28, 6144")
    a("v_lshlrev_b32 v4, 5, v2")
    a("v_add_u32 v4, s34, v4")
    for i in range(3):
        for hf in range(2):
            r = ACC + i * 8 + hf * 4
            a("ds_write_b128 v4, v[%d:%d] offset:%d" % (r, r + 3, i * 2048 + hf * 16))
    a("s_waitcnt lgkmcnt(0)")
    a("s_mul_i32 s35, s30, 48")
    a("s_lshl_b32 s36, s31, 1")
    a("s_add_u32 s35, s35, s36")
    a("s_mul_i32 s35, s35, 192")
    for k in range(3):
        a("v_mov_b32 v11, 96")
        a("v_add_u32 v5, %d, v2" % (64 * k))
        a("v_cmp_le_u32 vcc, 96, v5")
        a("s_nop 1")
        a("v_cndmask_b32 v6, 0, v11, vcc")
        a("v_sub_u32 v7, v5, v6")
        a("v_lshrrev_b32 v8, 3, v7")
        a("v_add_u32 v8, v8, v6")
        a("v_lshlrev_b32 v8, 5, v8")
        a("v_and_b32 v9, 7, v7")
        a("v_lshlrev_b32 v9, 2, v9")
        a("v_add3_u32 v8, v8, v9, s34")
        for px in range(8):
            a("ds_read_b32 v%d, v8 offset:%d" % (10 + px, px * 384))
        a("s_waitcnt lgkmcnt(0)")
        a("v_add_f32 v10, v10, v11")
        for px in range(2, 8):
            a("v_add_f32 v10, v10, v%d" % (10 + px))
        a("v_mul_f32 v10, 0x3c800000, v10")
        a("v_cvt_pk_bf16_f32 v10, v10, v10")
        a("v_lshlrev_b32 v5, 1, v5")
        a("v_add_u32 v5, s35, v5")
        a("buffer_store_short v10, v5, s[12:15], 0 offen offset:0")
    a("s_branch L_p1_end")
    a.label("L_p1_tr")
    a("s_sub_u32 s28, s2, %d" % NWG_MEANS)
    a("s_lshl_b32 s28, s28, 8")
    a("v_add_u32 v1, s28, v0")
    a("v_lshlrev_b32 v1, 2, v1")
    a("s_cmp_ge_u32 s2, %d" % (NWG_MEANS + NWG_TR_KV))
    a("s_cbranch_scc1 L_p1_tr_wo")
    a("s_mov_b32 s29, 43691")
    a("v_mul_lo_u32 v2, v1, s29")
    a("v_lshrrev_b32 v2, 22, v2")
    a("v_mul_u32_u24 v3, 96, v2")
    a("v_sub_u32 v3, v1, v3")
    a("v_mul_u32_u24 v4, 192, v3")
    a("v_add_u32 v4, v4, v2")
    a("v_lshlrev_b32 v4, 1, v4")
    for k in range(4):
        a("buffer_load_ushort v%d, v4, s[16:19], 0 offen offset:%d" % (6 + k, k * 384))
    a("s_waitcnt vmcnt(0)")
    a("v_lshlrev_b32 v7, 16, v7")
    a("v_or_b32 v6, v6, v7")
    a("v_lshlrev_b32 v9, 16, v9")
    a("v_or_b32 v7, v8, v9")
    a("v_lshlrev_b32 v1, 1, v1")
    a("v_add_u32 v1, 0x%x, v1" % WKVT_OFF)
    a("buffer_store_dwordx2 v[6:7], v1, s[12:15], 0 offen")
    a("s_branch L_p1_end")
    a.label("L_p1_tr_wo")
    a("v_subrev_u32 v1, 18432, v1")
    a("s_mov_b32 s29, 43691")
    a("v_mul_lo_u32 v2, v1, s29")
    a("v_lshrrev_b32 v2, 22, v2")
    a("v_mul_u32_u24 v3, 96, v2")
    a("v_sub_u32 v3, v1, v3")
    a("v_mul_u32_u24 v4, 96, v3")
    a("v_add_u32 v4, v4, v2")
    a("v_lshlrev_b32 v4, 1, v4")
    for k in range(4):
        a("buffer_load_ushort v%d, v4, s[24:27], 0 offen offset:%d" % (6 + k, k * 192))
    a("s_waitcnt vmcnt(0)")
    a("v_lshlrev_b32 v7, 16, v7")
    a("v_or_b32 v6, v6, v7")
    a("v_lshlrev_b32 v9, 16, v9")
    a("v_or_b32 v7, v8, v9")
    a("v_lshlrev_b32 v1, 1, v1")
    a("v_add_u32 v1, 0x%x, v1" % WOT_OFF)
    a("buffer_store_dwordx2 v[6:7], v1, s[12:15], 0 offen")
    a.label("L_p1_end")
    a("s_endpgm")
    return kernel_header(NAME) + a.text() + kernel_desc(NAME, 128, 40)
```

```python
from common import *

NAME = "prep_kv_kernel"
NWG = 72
KVS = 400
KPS = 208
KP_OFF = 32 * KVS
LDS = KP_OFF + 32 * KPS
SC = (96 ** -0.5) * math.log2(math.e)

def gen():
    a = Asm()
    a("s_cmp_ge_u32 s2, %d" % NWG)
    a("s_cbranch_scc1 L_p2_end")
    a("s_load_dwordx2 s[4:5], s[0:1], 8")
    a("s_load_dwordx2 s[6:7], s[0:1], 48")
    a("s_waitcnt lgkmcnt(0)")
    srd(a, 8, 6, 7, WS_BYTES)
    srd(a, 12, 4, 5, 96 * 96 * 2)
    a("v_lshrrev_b32 v1, 6, v0")
    a("v_and_b32 v2, 63, v0")
    a("s_nop 0")
    a("v_readfirstlane_b32 s16, v1")
    a("v_and_b32 v3, 31, v2")
    a("v_lshrrev_b32 v4, 5, v2")
    a("v_mul_u32_u24 v5, 192, v3")
    a("v_lshl_add_u32 v5, v4, 4, v5")
    a("s_mul_i32 s17, s2, 6144")
    a("s_mul_i32 s18, s16, 12288")
    a("s_add_u32 s18, s18, 0x%x" % WKVT_OFF)
    a("s_add_u32 s19, s18, 6144")
    a("s_mul_i32 s20, s16, 6144")
    a("s_add_u32 s21, s20, 0x%x" % WOT_OFF)
    XA = 8; B0 = 32; B1 = 56; WQ = 80; WO = 104; D = 128; D2 = 144
    for s in range(6):
        a("buffer_load_dwordx4 v[%d:%d], v5, s[8:11], s17 offen offset:%d" % (XA + 4 * s, XA + 4 * s + 3, 32 * s))
    for s in range(6):
        a("buffer_load_dwordx4 v[%d:%d], v5, s[8:11], s18 offen offset:%d" % (B0 + 4 * s, B0 + 4 * s + 3, 32 * s))
    for s in range(6):
        a("buffer_load_dwordx4 v[%d:%d], v5, s[8:11], s19 offen offset:%d" % (B1 + 4 * s, B1 + 4 * s + 3, 32 * s))
    for s in range(6):
        a("buffer_load_dwordx4 v[%d:%d], v5, s[12:15], s20 offen offset:%d" % (WQ + 4 * s, WQ + 4 * s + 3, 32 * s))
    for s in range(6):
        a("buffer_load_dwordx4 v[%d:%d], v5, s[8:11], s21 offen offset:%d" % (WO + 4 * s, WO + 4 * s + 3, 32 * s))
    a("v_mul_u32_u24 v6, %d, v4" % (4 * KVS))
    a("v_lshl_add_u32 v6, v3, 1, v6")
    a("s_lshl_b32 s22, s16, 7")
    a("v_add_u32 v6, s22, v6")
    a("s_waitcnt vmcnt(12)")
    for nbi, B, Dr in ((0, B0, D), (1, B1, D2)):
        for s in range(6):
            c = "0" if s == 0 else "v[%d:%d]" % (Dr, Dr + 15)
            a("v_mfma_f32_32x32x16_bf16 v[%d:%d], v[%d:%d], v[%d:%d], %s" % (Dr, Dr + 15, XA + 4 * s, XA + 4 * s + 3, B + 4 * s, B + 4 * s + 3, c))
    a("s_nop 15")
    a("s_nop 3")
    for nbi, Dr in ((0, D), (1, D2)):
        for i in range(0, 16, 2):
            a("v_cvt_pk_bf16_f32 v7, v%d, v%d" % (Dr + i, Dr + i + 1))
            k0 = 8 * (i // 4) + i % 4
            a("ds_write_b16 v6, v7 offset:%d" % (k0 * KVS + nbi * 64))
            a("ds_write_b16_d16_hi v6, v7 offset:%d" % ((k0 + 1) * KVS + nbi * 64))
    a("s_waitcnt lgkmcnt(0)")
    a("s_barrier")
    a("v_mul_u32_u24 v7, %d, v3" % KVS)
    a("v_lshl_add_u32 v7, v4, 4, v7")
    KA = XA
    for s in range(6):
        a("ds_read_b128 v[%d:%d], v7 offset:%d" % (KA + 4 * s, KA + 4 * s + 3, 32 * s))
    VA = B0
    for s in range(6):
        a("ds_read_b128 v[%d:%d], v7 offset:%d" % (VA + 4 * s, VA + 4 * s + 3, 192 + 32 * s))
    a("s_waitcnt vmcnt(0) lgkmcnt(0)")
    for s in range(6):
        c = "0" if s == 0 else "v[%d:%d]" % (D, D + 15)
        a("v_mfma_f32_32x32x16_bf16 v[%d:%d], v[%d:%d], v[%d:%d], %s" % (D, D + 15, KA + 4 * s, KA + 4 * s + 3, WQ + 4 * s, WQ + 4 * s + 3, c))
    for s in range(6):
        c = "0" if s == 0 else "v[%d:%d]" % (D2, D2 + 15)
        a("v_mfma_f32_32x32x16_bf16 v[%d:%d], v[%d:%d], v[%d:%d], %s" % (D2, D2 + 15, VA + 4 * s, VA + 4 * s + 3, WO + 4 * s, WO + 4 * s + 3, c))
    a("s_nop 15")
    a("s_nop 3")
    a("v_mul_u32_u24 v6, %d, v4" % (4 * KPS))
    a("v_lshl_add_u32 v6, v3, 1, v6")
    a("s_lshl_b32 s22, s16, 6")
    a("s_add_u32 s22, s22, %d" % KP_OFF)
    a("v_add_u32 v6, s22, v6")
    a("s_mov_b32 s23, 0x%x" % f32bits(SC))
    for i in range(0, 16, 2):
        a("v_mul_f32 v%d, s23, v%d" % (D + i, D + i))
        a("v_mul_f32 v%d, s23, v%d" % (D + i + 1, D + i + 1))
        a("v_cvt_pk_bf16_f32 v8, v%d, v%d" % (D + i, D + i + 1))
        k0 = 8 * (i // 4) + i % 4
        a("ds_write_b16 v6, v8 offset:%d" % (k0 * KPS))
        a("ds_write_b16_d16_hi v6, v8 offset:%d" % ((k0 + 1) * KPS))
    for u in range(2):
        for k in range(4):
            a("v_cvt_pk_bf16_f32 v%d, v%d, v%d" % (160 + 4 * u + k, D2 + 8 * u + 2 * k, D2 + 8 * u + 2 * k + 1))
    a("s_mul_i32 s24, s2, 12288")
    a("s_add_u32 s24, s24, 0x%x" % KV_OFF)
    a("v_lshlrev_b32 v9, 4, v2")
    a("v_add_u32 v9, s24, v9")
    a("s_lshl_b32 s25, s16, 11")
    a("v_add_u32 v10, s25, v9")
    a("v_add_u32 v11, 6144, v10")
    for u in range(2):
        a("buffer_store_dwordx4 v[%d:%d], v11, s[8:11], 0 offen offset:%d" % (160 + 4 * u, 163 + 4 * u, u * 1024))
    a("s_waitcnt lgkmcnt(0)")
    a("v_mul_u32_u24 v7, %d, v3" % KPS)
    a("v_lshl_add_u32 v7, v4, 4, v7")
    a("s_lshl_b32 s22, s16, 6")
    a("s_add_u32 s22, s22, %d" % KP_OFF)
    a("v_add_u32 v7, s22, v7")
    a("ds_read_b128 v[168:171], v7")
    a("ds_read_b128 v[172:175], v7 offset:32")
    a("s_waitcnt lgkmcnt(0)")
    a("buffer_store_dwordx4 v[168:171], v10, s[8:11], 0 offen offset:0")
    a("buffer_store_dwordx4 v[172:175], v10, s[8:11], 0 offen offset:1024")
    a.label("L_p2_end")
    a("s_endpgm")
    return kernel_header(NAME) + a.text() + kernel_desc(NAME, 176, 40)
```

```python
import sys
sys.path.insert(0, "gen")
import importlib
import common, p1, p2, mainkern
HEADER = open("standalone__window_attn_twins__vision.s.ref").read().split("; @launch")[0]
def build(path, which=("p1", "p2", "main")):
    s = HEADER
    if "p1" in which:
        s += "; @launch kernel=%s grid=(%d,1,1) block=(256,1,1) lds=%d\n" % (p1.NAME, p1.NWG, p1.LDS)
    if "p2" in which:
        s += "; @launch kernel=%s grid=(%d,1,1) block=(192,1,1) lds=%d\n" % (p2.NAME, p2.NWG, p2.LDS)
    if "main" in which:
        s += "; @launch kernel=%s grid=(%d,1,1) block=(768,1,1) lds=%d\n" % (mainkern.NAME, mainkern.NWG, mainkern.LDS)
    s += '.amdgcn_target "amdgcn-amd-amdhsa--gfx950"\n'
    if "p1" in which: s += p1.gen()
    if "p2" in which: s += p2.gen()
    if "main" in which: s += mainkern.gen()
    open(path, "w").write(s)
if __name__ == "__main__":
    out = sys.argv[1] if len(sys.argv) > 1 else "standalone__window_attn_twins__vision.s"
    build(out)
```
